```python
import torch

def _softmax(x, axis=-1):
    return torch.softmax(x, dim=axis)
def _gelu(x):
    return torch.nn.functional.gelu(x, approximate="tanh")
def _silu(x):
    return torch.nn.functional.silu(x)
def _sigmoid(x):
    return torch.sigmoid(x)
def _layernorm(x, axis=-1, eps=1e-5):
    m = x.mean(dim=axis, keepdim=True)
    v = x.var(dim=axis, keepdim=True, unbiased=False)
    return (x - m) / torch.sqrt(v + eps)
def _scatter_add(tgt, idx, src, axis=0):
    return tgt.clone().index_add_(axis, idx, src)
def _segment_sum(src, seg, n):
    out = torch.zeros((n,) + src.shape[1:], dtype=src.dtype)
    return out.index_add_(0, seg, src)
def _pad(x, pw):
    flat = tuple(v for pair in reversed(pw) for v in pair)
    return torch.nn.functional.pad(x, flat)

kernel_name = 'sequential_preLN__grouped_kv_mqa__dense_activation_squared_relu__prompt'

def setup_inputs():

    _w = (lambda a: (lambda t: t.to(torch.bfloat16) if t.is_floating_point() else t)(torch.as_tensor(a)))
    def _A_setup():
        B, S, D, H = 1, 2048, 640, 32
        Dh = D // H
        return {
            "x": _w((lambda *s: torch.randn(*s, dtype=torch.bfloat16) * 0.05)(B, S, D)),
            "wq": _w((lambda *s: torch.randn(*s, dtype=torch.bfloat16) * 0.05)(D, H * Dh)),
            "wk": _w((lambda *s: torch.randn(*s, dtype=torch.bfloat16) * 0.05)(D, Dh)),
            "wv": _w((lambda *s: torch.randn(*s, dtype=torch.bfloat16) * 0.05)(D, Dh)),
            "wo": _w((lambda *s: torch.randn(*s, dtype=torch.bfloat16) * 0.05)(H * Dh, D)),
        }
    _A_in = _A_setup()

    def _B_setup():
        B, S, D, F = 1, 2048, 640, 1536
        return {
            "x": _w((lambda *s: torch.randn(*s, dtype=torch.bfloat16) * 0.05)(B, S, D)),
            "w1": _w((lambda *s: torch.randn(*s, dtype=torch.bfloat16) * 0.05)(D, F)),
            "b1": _w((lambda *s: torch.randn(*s, dtype=torch.bfloat16) * 0.8)(F)),
            "w2": _w((lambda *s: torch.randn(*s, dtype=torch.bfloat16) * 0.05)(F, D)),
            "b2": _w((lambda *s: torch.randn(*s, dtype=torch.bfloat16) * 3.2)(D)),
        }
    _B_in = _B_setup()

    return {
        "A_x": _A_in["x"],
        "A_wq": _A_in["wq"],
        "A_wk": _A_in["wk"],
        "A_wv": _A_in["wv"],
        "A_wo": _A_in["wo"],
        "B_x": _B_in["x"],
        "B_w1": _B_in["w1"],
        "B_b1": _B_in["b1"],
        "B_w2": _B_in["w2"],
        "B_b2": _B_in["b2"],
    }

def reference(A_x, A_wq, A_wk, A_wv, A_wo, B_x, B_w1, B_b1, B_w2, B_b2):
    def _A_ref(x, wq, wk, wv, wo):
        B, S, D = x.shape
        H = 32
        Dh = D // H
        q = (lambda x, *d: x.permute(*d))((x @ wq).reshape(B, S, H, Dh), 0, 2, 1, 3)
        k = x @ wk
        v = x @ wv
        scores = torch.einsum("bhqd,bkd->bhqk", q, k) * (Dh ** -0.5)
        p = _softmax(scores, axis=-1)
        o = torch.einsum("bhqk,bkd->bhqd", p, v)
        return (lambda x, *d: x.permute(*d))(o, 0, 2, 1, 3).reshape(B, S, H * Dh) @ wo

    def _B_ref(x, w1, b1, w2, b2):
        h = torch.einsum("bsd,df->bsf", x, w1) + b1
        zero = torch.zeros_like(h)
        r = torch.where(h > zero, h, zero)
        h = r * r
        out = torch.einsum("bsf,fd->bsd", h, w2) + b2
        return out

    x = A_x
    h = x + _A_ref(_layernorm(x, axis=-1), A_wq, A_wk, A_wv, A_wo)
    h2 = h + _B_ref(_layernorm(h, axis=-1), B_w1, B_b1, B_w2, B_b2)
    return h2
```

```python
class Asm:
    def __init__(self):
        self.lines = []
        self.vm = 0
        self.lg = 0
        self.uid = 0
    def __call__(self, s):
        for l in s.strip("\n").split("\n"):
            l = l.strip()
            if l:
                self.lines.append("    " + l)
    def label(self, l):
        self.lines.append(l + ":")
    def newlabel(self, p="L"):
        self.uid += 1
        return f"{p}_{self.uid}"
    def comment(self, s):
        self.lines.append("    ; " + s)
    def vmem(self, s):
        self(s); self.vm += 1; return self.vm
    def ds(self, s):
        self(s); self.lg += 1; return self.lg
    def wait_vm(self, tok):
        n = self.vm - tok
        assert n >= 0
        assert n <= 63, n
        self(f"s_waitcnt vmcnt({n})")
    def wait_lg(self, tok):
        n = self.lg - tok
        assert n >= 0
        n = min(n, 15)
        self(f"s_waitcnt lgkmcnt({n})")
    def text(self):
        return "\n".join(self.lines) + "\n"

def vr(b, n=1):
    return f"v{b}" if n == 1 else f"v[{b}:{b+n-1}]"
def ar(b, n=1):
    return f"a{b}" if n == 1 else f"a[{b}:{b+n-1}]"
def sr(b, n=1):
    return f"s{b}" if n == 1 else f"s[{b}:{b+n-1}]"

def kernel_desc(name, nvgpr, accum, nsgpr=96):
    return f""".amdhsa_kernel {name}
  .amdhsa_next_free_vgpr {nvgpr}
  .amdhsa_next_free_sgpr {nsgpr}
  .amdhsa_accum_offset {accum}
  .amdhsa_group_segment_fixed_size 0
  .amdhsa_kernarg_size 104
  .amdhsa_user_sgpr_count 2
  .amdhsa_user_sgpr_kernarg_segment_ptr 1
  .amdhsa_system_sgpr_workgroup_id_x 1
.end_amdhsa_kernel
"""
```

```python
import sys, struct, math
from asmlib import *

NAME = "sequential_preLN__grouped_kv_mqa__dense_activation_squared_relu__prompt"
S, D, H, DH, F = 2048, 640, 32, 20, 1536

WS_Q  = 0x000000; SZ_Q = S*D*2
WS_KV = 0x280000; TB = 2624; SZ_KV = 64*TB
WS_O  = 0x300000; SZ_O = S*D*2
WS_H  = 0x600000; SZ_H = S*D*2
WS_ST = 0x900000; SZ_ST = S*8*8
WS_Z  = 0xA00000; SZ_Z = S*F*2

def f32bits(x):
    return struct.unpack("<I", struct.pack("<f", x))[0]

P_X, P_WQ, P_WK, P_WV, P_WO, P_BX, P_W1, P_B1 = 8, 10, 12, 14, 16, 18, 20, 22
P_W2, P_B2, P_OUT, P_DBG, P_WS = 24, 26, 28, 30, 32

def prologue(A, kname, nwg):
    A.lines.append(f".globl {kname}\n.p2align 8\n.type {kname},@function\n{kname}:")
    A(f"s_cmp_ge_u32 s2, {nwg}")
    A(f"s_cbranch_scc1 {kname}_end")
    A("s_load_dwordx16 s[8:23], s[0:1], 0")
    A("s_load_dwordx8 s[24:31], s[0:1], 64")
    A("s_load_dwordx2 s[32:33], s[0:1], 96")
    A("v_lshrrev_b32 v2, 6, v0")
    A("v_and_b32 v1, 63, v0")
    A("v_readfirstlane_b32 s3, v2")
    A("s_waitcnt lgkmcnt(0)")

def srd(A, d, p, off, size):
    if off:
        A(f"s_add_u32 s{d}, s{p}, {off:#x}")
        A(f"s_addc_u32 s{d+1}, s{p+1}, 0")
    else:
        A(f"s_mov_b32 s{d}, s{p}")
        A(f"s_mov_b32 s{d+1}, s{p+1}")
    A(f"s_mov_b32 s{d+2}, {size:#x}")
    A(f"s_mov_b32 s{d+3}, 0x00020000")

def epilogue_end(A, kname):
    A.label(f"{kname}_end")
    A("s_endpgm")

def bf16r(A, dst, src):
    A(f"v_cvt_pk_bf16_f32 v{dst}, v{src}, v{src}")
    A(f"v_lshlrev_b32 v{dst}, 16, v{dst}")

def reduce_q4(A, r, t):
    A(f"v_mov_b32 v{t}, v{r}")
    A("s_nop 1")
    A(f"v_permlane16_swap_b32 v{r}, v{t}")
    A("s_nop 1")
    A(f"v_add_f32 v{r}, v{r}, v{t}")
    A(f"v_mov_b32 v{t}, v{r}")
    A("s_nop 1")
    A(f"v_permlane32_swap_b32 v{r}, v{t}")
    A("s_nop 1")
    A(f"v_add_f32 v{r}, v{r}, v{t}")

def ln_stats(A, vsum, vsq, vmean, vrstd, t):
    A(f"v_mul_f32 v{vmean}, {f32bits(1.0/D):#x}, v{vsum}")
    A(f"v_mul_f32 v{t}, {f32bits(1.0/D):#x}, v{vsq}")
    A(f"v_fma_f32 v{t}, -v{vmean}, v{vmean}, v{t}")
    A(f"v_max_f32 v{t}, 0, v{t}")
    bf16r(A, t, t)
    A(f"v_add_f32 v{t}, {f32bits(1e-5):#x}, v{t}")
    bf16r(A, t, t)
    A(f"v_sqrt_f32 v{t}, v{t}")
    A("s_nop 0")
    bf16r(A, t, t)
    A(f"v_rcp_f32 v{vrstd}, v{t}")
    bf16r(A, vmean, vmean)

class Gemm:
    def __init__(self, A, kname, a, NT, KST, act_mode, astride, wstride, nslot, pd, act_agpr, colsum, stats, extra_tile=False):
        self.__dict__.update(locals())
        self.NST = KST // 2
        self.SLOTB = 12288
        v = 4
        self.vAoff = v; v += 1
        self.vW = v; v += 3
        self.vBe = v; v += 1
        self.vBo = v; v += 1
        self.vX = v; v += 1
        v = (v + 3) & ~3
        self.vOnes = v; v += 4
        self.vT = v; v += 9
        v = (v + 3) & ~3
        self.NTT = NT + (1 if extra_tile else 0)
        self.wf = v; v += 2 * self.NTT * 4
        self.acc = v; v += a * self.NTT * 4
        if colsum:
            self.cs = v; v += self.NTT * 4
        if stats:
            self.st = v; v += 2 * a
            v = (v + 3) & ~3
        if not act_agpr:
            self.act = v; v += KST * a * 4
        else:
            self.act = 0
        self.vfree = v
        self.sW, self.sA = 36, 40
        self.sWm0 = 44; self.sT = 45; self.sT2 = 46

    def actreg(self, ks, mi):
        b = self.act + (ks * self.a + mi) * 4
        return ar(b, 4) if self.act_agpr else vr(b, 4)

    def setup(self, s_m0row, s_nb):
        A = self.A; T = self.vT
        NT = self.NT
        A(f"v_lshrrev_b32 v{T}, 2, v1")
        A(f"s_lshl_b32 s{self.sT}, s3, 4")
        A(f"v_add_u32 v{T}, s{self.sT}, v{T}")
        A(f"s_mov_b32 s{self.sT}, {self.wstride}")
        A(f"v_mul_lo_u32 v{T}, v{T}, s{self.sT}")
        A(f"v_and_b32 v{T+1}, 3, v1")
        A(f"v_lshrrev_b32 v{T+2}, 4, v1")
        A(f"v_and_b32 v{T+2}, 2, v{T+2}")
        A(f"v_xor_b32 v{T+1}, v{T+1}, v{T+2}")
        A(f"v_lshl_add_u32 v{T}, v{T+1}, 4, v{T}")
        A(f"s_mul_i32 s{self.sT}, {s_nb}, {NT*32}")
        A(f"s_and_b32 s{self.sT2}, s{self.sT}, 32")
        A(f"s_sub_u32 s{self.sT}, s{self.sT}, s{self.sT2}")
        A(f"v_add_u32 v{self.vW}, s{self.sT}, v{T}")
        A(f"v_add_u32 v{self.vW+1}, 64, v{self.vW}")
        A(f"v_add_u32 v{self.vW+2}, 0x80, v{self.vW}")
        A(f"v_lshrrev_b32 v{T}, 5, v1")
        A(f"v_mul_u32_u24 v{T}, 3072, v{T}")
        A(f"v_bfe_u32 v{T+1}, v1, 4, 1")
        A(f"v_bfe_u32 v{T+2}, v1, 2, 2")
        A(f"v_lshl_add_u32 v{T+2}, v{T+1}, 3, v{T+2}")
        A(f"v_lshl_add_u32 v{T}, v{T+2}, 6, v{T}")
        A(f"v_and_b32 v{T+2}, 3, v1")
        A(f"v_lshl_add_u32 v{T}, v{T+2}, 3, v{T}")
        A(f"v_lshlrev_b32 v{T+1}, 5, v{T+1}")
        A(f"v_xor_b32 v{T+2}, s{self.sT2}, v{T+1}")
        A(f"v_add_u32 v{self.vBe}, v{T}, v{T+2}")
        A(f"v_xor_b32 v{T+2}, 32, v{T+2}")
        A(f"v_add_u32 v{self.vBo}, v{T}, v{T+2}")
        A(f"s_lshl_b32 s{self.sT2}, s{self.sT2}, 5")
        A(f"v_add_u32 v{self.vBo}, s{self.sT2}, v{self.vBo}")
        self.bias = 0
        if self.act_mode == "row":
            A(f"s_mul_i32 s{self.sT}, s3, {16*self.a}")
            A(f"s_add_u32 s{self.sT}, s{self.sT}, {s_m0row}")
            A(f"v_and_b32 v{T}, 15, v1")
            A(f"v_add_u32 v{T}, s{self.sT}, v{T}")
            A(f"s_mov_b32 s{self.sT}, {self.astride}")
            A(f"v_mul_lo_u32 v{T}, v{T}, s{self.sT}")
            A(f"v_lshrrev_b32 v{T+1}, 4, v1")
            A(f"v_lshl_add_u32 v{self.vAoff}, v{T+1}, 4, v{T}")
        else:
            A(f"s_lshr_b32 s{self.sT}, {s_m0row}, 4")
            A(f"s_mul_i32 s{self.sT2}, s3, {self.a}")
            A(f"s_add_u32 s{self.sT}, s{self.sT}, s{self.sT2}")
            A(f"s_mul_i32 s{self.sT}, s{self.sT}, {self.KST*1024}")
            A(f"v_lshlrev_b32 v{T}, 4, v1")
            A(f"v_add_u32 v{self.vAoff}, s{self.sT}, v{T}")
        A(f"s_mul_i32 s{self.sWm0}, s3, 3072")
        for i in range(4):
            A(f"v_mov_b32 v{self.vOnes+i}, 0x3f803f80")
        for i in range(self.a * self.NTT * 4):
            A(f"v_mov_b32 v{self.acc+i}, 0")
        if self.colsum:
            for i in range(self.NTT * 4):
                A(f"v_mov_b32 v{self.cs+i}, 0")
        if self.stats:
            for i in range(2 * self.a):
                A(f"v_mov_b32 v{self.st+i}, 0")

    def issue_stage(self, s):
        A = self.A
        slot = s % self.nslot
        A(f"s_mov_b32 s{self.sT}, {s*64*self.wstride}")
        for pb in range(3):
            A(f"s_add_u32 m0, s{self.sWm0}, {slot*self.SLOTB + pb*1024}")
            A("s_nop 0")
            A.vmem(f"buffer_load_dwordx4 v{self.vW+pb}, s[{self.sW}:{self.sW+3}], s{self.sT} offen lds")
        tok = None
        for kk in range(2):
            ks = 2 * s + kk
            for mi in range(self.a):
                if self.act_mode == "row":
                    if mi == 0:
                        so = "0"
                    else:
                        A(f"s_mov_b32 s{self.sT2}, {mi*16*self.astride}")
                        so = f"s{self.sT2}"
                    tok = A.vmem(f"buffer_load_dwordx4 {self.actreg(ks, mi)}, v{self.vAoff}, s[{self.sA}:{self.sA+3}], {so} offen offset:{ks*64}")
                else:
                    off = (mi * self.KST + ks) * 1024
                    hi, lo = off & ~4095, off & 4095
                    if hi:
                        A(f"s_mov_b32 s{self.sT2}, {hi}")
                        so = f"s{self.sT2}"
                    else:
                        so = "0"
                    tok = A.vmem(f"buffer_load_dwordx4 {self.actreg(ks, mi)}, v{self.vAoff}, s[{self.sA}:{self.sA+3}], {so} offen offset:{lo}")
        self.stage_tok[s] = tok

    def read_w(self, ks):
        A = self.A
        s, kk = ks // 2, ks % 2
        slot = s % self.nslot
        need = (slot // 4) * 4 * self.SLOTB
        if need != self.bias:
            d = need - self.bias
            op = "v_add_u32" if d > 0 else "v_subrev_u32"
            A(f"{op} v{self.vBe}, {abs(d)}, v{self.vBe}")
            A(f"{op} v{self.vBo}, {abs(d)}, v{self.vBo}")
            self.bias = need
        buf = self.wf + (ks % 2) * self.NTT * 4
        tok = None
        for t in range(self.NT):
            base = self.vBe if t % 2 == 0 else self.vBo
            off = slot * self.SLOTB - self.bias + kk * 6144 + (t >> 1) * 1024
            for rd in range(2):
                tok = A.ds(f"ds_read_b64_tr_b16 {vr(buf + t*4 + rd*2, 2)}, v{base} offset:{off + rd*256}")
        if self.extra_tile:
            t = self.NT
            for rd in range(2):
                tok = A.ds(f"ds_read_b64_tr_b16 {vr(buf + t*4 + rd*2, 2)}, v{self.vX} offset:{ks*32*40 + rd*160}")
        return tok

    def sync(self, s):
        A = self.A
        A.wait_vm(self.stage_tok[s])
        if self.nslot < self.NST:
            A("s_waitcnt lgkmcnt(0)")
        A("s_barrier")
        if s + self.pd < self.NST:
            self.issue_stage(s + self.pd)

    def mainloop(self):
        A = self.A
        self.stage_tok = {}
        for s in range(min(self.pd, self.NST)):
            self.issue_stage(s)
        self.sync(0)
        tok = self.read_w(0)
        for ks in range(self.KST):
            ntok = None
            if ks + 1 < self.KST:
                if (ks + 1) % 2 == 0:
                    self.sync((ks + 1) // 2)
                ntok = self.read_w(ks + 1)
            A.wait_lg(tok)
            buf = self.wf + (ks % 2) * self.NTT * 4
            for mi in range(self.a):
                for t in range(self.NTT):
                    c = vr(self.acc + (mi * self.NTT + t) * 4, 4)
                    A(f"v_mfma_f32_16x16x32_bf16 {c}, {vr(buf+t*4,4)}, {self.actreg(ks, mi)}, {c}")
                if self.stats:
                    b = self.act + (ks * self.a + mi) * 4
                    for j in range(4):
                        A(f"v_dot2_f32_bf16 v{self.st+2*mi}, v{b+j}, v{self.vOnes}, v{self.st+2*mi}")
                        A(f"v_dot2_f32_bf16 v{self.st+2*mi+1}, v{b+j}, v{b+j}, v{self.st+2*mi+1}")
            if self.colsum:
                lab = A.newlabel(f"{self.kname}_cs")
                A(f"s_cmp_lg_u32 s3, {ks % 4}")
                A(f"s_cbranch_scc1 {lab}")
                for t in range(self.NTT):
                    c = vr(self.cs + t * 4, 4)
                    A(f"v_mfma_f32_16x16x32_bf16 {c}, {vr(buf+t*4,4)}, {vr(self.vOnes,4)}, {c}")
                A.label(lab)
            tok = ntok
        A("s_nop 7")
        A("s_nop 7")

    def colsum_exchange(self):
        A = self.A; T = self.vT
        A("s_barrier")
        A(f"v_lshrrev_b32 v{T}, 4, v1")
        A(f"v_lshlrev_b32 v{T}, 4, v{T}")
        A(f"s_mul_i32 s{self.sT}, s3, {self.NTT*64}")
        A(f"v_add_u32 v{T+1}, s{self.sT}, v{T}")
        for t in range(self.NTT):
            A.ds(f"ds_write_b128 v{T+1}, {vr(self.cs+t*4,4)} offset:{t*64}")
        A("s_waitcnt lgkmcnt(0)")
        A("s_barrier")
        for w in range(4):
            for t in range(self.NTT):
                pass
        tmp = self.wf
        for w in range(4):
            dst = self.cs if w == 0 else tmp + ((w - 1) % 2) * self.NTT * 4
            for t in range(self.NTT):
                A.ds(f"ds_read_b128 {vr(dst+t*4,4)}, v{T} offset:{w*self.NTT*64 + t*64}")
            if w >= 1:
                A("s_waitcnt lgkmcnt(0)")
                for i in range(self.NTT * 4):
                    A(f"v_add_f32 v{self.cs+i}, v{self.cs+i}, v{dst+i}")

def decode_mb_nb(A, nmb_per_xcd, nnb):
    A("s_and_b32 s6, s2, 7")
    A("s_lshr_b32 s7, s2, 3")
    assert nmb_per_xcd * nnb == 32
    lg = int(math.log2(nnb))
    A(f"s_and_b32 s5, s7, {nnb-1}")
    A(f"s_lshr_b32 s7, s7, {lg}")
    A(f"s_mul_i32 s4, s6, {nmb_per_xcd}")
    A("s_add_u32 s4, s4, s7")

def k_qkv(A):
    kn = "qkv_kernel"
    prologue(A, kn, 256)
    decode_mb_nb(A, 4, 8)
    G = Gemm(A, kn, a=1, NT=5, KST=20, act_mode="row", astride=1280, wstride=1280, nslot=10, pd=10, act_agpr=False, colsum=True, stats=True, extra_tile=True)
    srd(A, G.sW, P_WQ, 0, D*D*2)
    srd(A, G.sA, P_X, 0, S*D*2)
    A("s_and_b32 s6, s5, 2")
    A("s_cmp_lg_u32 s6, 0")
    A(f"s_cselect_b32 s48, s{P_WV}, s{P_WK}")
    A(f"s_cselect_b32 s49, s{P_WV+1}, s{P_WK+1}")
    A(f"s_mov_b32 s50, {D*DH*2}")
    A("s_mov_b32 s51, 0x00020000")
    srd(A, 52, P_WS, WS_Q, SZ_Q)
    srd(A, 56, P_WS, WS_KV, SZ_KV)
    A("s_lshl_b32 s4, s4, 6")
    G.setup("s4", "s5")
    T = G.vT
    XB = 10 * G.SLOTB
    A(f"v_lshlrev_b32 v{T}, 4, v1")
    A(f"s_lshl_b32 s6, s3, 10")
    A(f"v_add_u32 v{T}, s6, v{T}")
    for i in range(7):
        A(f"s_add_u32 m0, s6, {XB + i*4096}")
        A(f"s_mov_b32 s7, {i*4096}")
        A.vmem(f"buffer_load_dwordx4 v{T}, s[48:51], s7 offen lds")
    A(f"v_lshrrev_b32 v{T+1}, 4, v1")
    A(f"v_bfe_u32 v{T+2}, v1, 2, 2")
    A(f"v_lshl_add_u32 v{T+1}, v{T+1}, 3, v{T+2}")
    A(f"v_mul_u32_u24 v{T+1}, 40, v{T+1}")
    A(f"v_and_b32 v{T+2}, 3, v1")
    A(f"v_lshl_add_u32 v{T+1}, v{T+2}, 3, v{T+1}")
    A("s_and_b32 s6, s5, 1")
    A("s_lshl_b32 s6, s6, 5")
    A(f"s_add_u32 s6, s6, {XB}")
    A(f"v_add_u32 v{G.vX}, s6, v{T+1}")
    G.mainloop()
    G.colsum_exchange()
    reduce_q4(A, G.st, T)
    reduce_q4(A, G.st + 1, T)
    vmean, vrstd, vrs = T + 1, T + 2, T + 3
    ln_stats(A, G.st, G.st + 1, vmean, vrstd, T)
    c = (DH ** -0.5) * math.log2(math.e)
    A(f"v_mul_f32 v{vrs}, {f32bits(c):#x}, v{vrstd}")
    A(f"s_lshl_b32 s6, s3, 4")
    A(f"s_add_u32 s6, s6, s4")
    A(f"v_and_b32 v{T+4}, 15, v1")
    A(f"v_add_u32 v{T+4}, s6, v{T+4}")
    A(f"v_mul_u32_u24 v{T+5}, 1280, v{T+4}")
    A(f"v_lshrrev_b32 v{T+6}, 4, v1")
    A(f"v_lshl_add_u32 v{T+5}, v{T+6}, 3, v{T+5}")
    A(f"s_mul_i32 s6, s5, 160")
    A(f"v_add_u32 v{T+5}, s6, v{T+5}")
    for t in range(6):
        sc = vrs if t < 5 else vrstd
        for r in range(4):
            i = G.acc + t * 4 + r
            A(f"v_fma_f32 v{i}, -v{vmean}, v{G.cs+t*4+r}, v{i}")
            A(f"v_mul_f32 v{i}, v{i}, v{sc}")
        b = G.acc + t * 4
        A(f"v_cvt_pk_bf16_f32 v{b}, v{b}, v{b+1}")
        A(f"v_cvt_pk_bf16_f32 v{b+1}, v{b+2}, v{b+3}")
        if t < 5:
            A.vmem(f"buffer_store_dwordx2 {vr(b,2)}, v{T+5}, s[52:55], 0 offen offset:{t*32}")
    b = G.acc + 20
    A("s_cmp_ge_u32 s5, 4")
    A(f"s_cbranch_scc1 {kn}_done")
    A(f"v_lshrrev_b32 v{T+5}, 5, v{T+4}")
    A(f"v_mul_u32_u24 v{T+5}, {TB}, v{T+5}")
    A(f"v_and_b32 v{T+7}, 31, v{T+4}")
    A("s_cmp_eq_u32 s5, 0")
    A(f"s_cbranch_scc1 {kn}_k0")
    A("s_cmp_eq_u32 s5, 1")
    A(f"s_cbranch_scc1 {kn}_k1")
    A(f"v_bfe_u32 v{T+8}, v{T+7}, 4, 1")
    A(f"v_bfe_u32 v{T}, v{T+7}, 2, 1")
    A(f"v_lshl_add_u32 v{T+8}, v{T+8}, 1, v{T}")
    A(f"v_mul_u32_u24 v{T+8}, 336, v{T+8}")
    A(f"v_add_u32 v{T+5}, v{T+5}, v{T+8}")
    A(f"v_bfe_u32 v{T+8}, v{T+7}, 3, 1")
    A(f"v_and_b32 v{T}, 3, v{T+7}")
    A(f"v_lshl_add_u32 v{T+8}, v{T+8}, 2, v{T}")
    A(f"v_lshl_add_u32 v{T+5}, v{T+8}, 1, v{T+5}")
    A(f"v_lshl_add_u32 v{T+5}, v{T+6}, 6, v{T+5}")
    A("s_cmp_eq_u32 s5, 3")
    A(f"s_cbranch_scc1 {kn}_v1")
    A(f"buffer_store_short v{b}, v{T+5}, s[56:59], 0 offen offset:{1280}")
    A(f"buffer_store_short_d16_hi v{b}, v{T+5}, s[56:59], 0 offen offset:{1280+16}")
    A(f"buffer_store_short v{b+1}, v{T+5}, s[56:59], 0 offen offset:{1280+32}")
    A(f"buffer_store_short_d16_hi v{b+1}, v{T+5}, s[56:59], 0 offen offset:{1280+48}")
    A(f"s_branch {kn}_done")
    A.label(f"{kn}_v1")
    A(f"v_mov_b32 v{T}, 0x3f80")
    A("s_mov_b32 exec_lo, 0xffff0000\ns_mov_b32 exec_hi, 0")
    A(f"buffer_store_short v{T}, v{T+5}, s[56:59], 0 offen offset:{1280+256}")
    A("s_mov_b32 exec_lo, 0xffff\ns_mov_b32 exec_hi, 0")
    A(f"buffer_store_short v{b}, v{T+5}, s[56:59], 0 offen offset:{1280+256}")
    A(f"buffer_store_short_d16_hi v{b}, v{T+5}, s[56:59], 0 offen offset:{1280+256+16}")
    A(f"buffer_store_short v{b+1}, v{T+5}, s[56:59], 0 offen offset:{1280+256+32}")
    A(f"buffer_store_short_d16_hi v{b+1}, v{T+5}, s[56:59], 0 offen offset:{1280+256+48}")
    A(f"s_branch {kn}_done")
    A.label(f"{kn}_k0")
    A(f"v_lshl_add_u32 v{T+5}, v{T+7}, 4, v{T+5}")
    A(f"v_lshrrev_b32 v{T+8}, 1, v{T+6}")
    A(f"v_lshl_add_u32 v{T+5}, v{T+8}, 9, v{T+5}")
    A(f"v_and_b32 v{T+8}, 1, v{T+6}")
    A(f"v_lshl_add_u32 v{T+5}, v{T+8}, 3, v{T+5}")
    A(f"buffer_store_dwordx2 {vr(b,2)}, v{T+5}, s[56:59], 0 offen")
    A(f"s_branch {kn}_done")
    A.label(f"{kn}_k1")
    A(f"v_lshl_add_u32 v{T+5}, v{T+7}, 3, v{T+5}")
    A("s_mov_b32 exec_lo, 0xffff\ns_mov_b32 exec_hi, 0")
    A(f"buffer_store_dwordx2 {vr(b,2)}, v{T+5}, s[56:59], 0 offen offset:1024")
    A.label(f"{kn}_done")
    epilogue_end(A, kn)
    lds = XB + 7 * 4096
    return kn, G.vfree, lds, 256

def frag_addr(A, dst, vrow, vk, KB, t0, t1):
    A(f"v_lshrrev_b32 v{t0}, 4, v{vrow}")
    A(f"v_mul_u32_u24 v{t0}, {KB*1024}, v{t0}")
    A(f"v_and_b32 v{t1}, 15, v{vrow}")
    A(f"v_lshl_add_u32 v{t0}, v{t1}, 4, v{t0}")
    A(f"v_lshrrev_b32 v{t1}, 3, v{vk}")
    A(f"v_lshl_add_u32 v{t0}, v{t1}, 8, v{t0}")
    A(f"v_bfe_u32 v{t1}, v{vk}, 2, 1")
    A(f"v_lshl_add_u32 v{dst}, v{t1}, 3, v{t0}")

def k_wo(A):
    kn = "wo_kernel"
    prologue(A, kn, 256)
    decode_mb_nb(A, 4, 8)
    G = Gemm(A, kn, a=1, NT=5, KST=20, act_mode="frag", astride=0, wstride=1280, nslot=10, pd=10, act_agpr=True, colsum=False, stats=False)
    srd(A, G.sW, P_WO, 0, D*D*2)
    srd(A, G.sA, P_WS, WS_O, SZ_O)
    srd(A, 48, P_X, 0, S*D*2)
    srd(A, 52, P_WS, WS_H, SZ_H)
    srd(A, 56, P_WS, WS_ST, SZ_ST)
    A("s_lshl_b32 s4, s4, 6")
    G.setup("s4", "s5")
    T = G.vT
    xr = G.vfree; G.vfree += 10
    e = G.vfree; G.vfree += 8
    A(f"s_lshl_b32 s6, s3, 4")
    A(f"s_add_u32 s6, s6, s4")
    A(f"v_and_b32 v{e}, 15, v1")
    A(f"v_add_u32 v{e}, s6, v{e}")
    A(f"v_lshrrev_b32 v{e+1}, 4, v1")
    A(f"s_mul_i32 s6, s5, 80")
    A(f"v_lshl_add_u32 v{e+2}, v{e+1}, 2, s6")
    A(f"v_mul_u32_u24 v{e+3}, 1280, v{e}")
    A(f"v_lshl_add_u32 v{e+3}, v{e+2}, 1, v{e+3}")
    xt = None
    for t in range(5):
        xt = A.vmem(f"buffer_load_dwordx2 {vr(xr+2*t,2)}, v{e+3}, s[48:51], 0 offen offset:{t*32}")
    frag_addr(A, e + 4, e, e + 2, 20, T, T + 1)
    G.mainloop()
    A(f"v_mov_b32 v{e+5}, 0")
    A(f"v_mov_b32 v{e+6}, 0")
    for t in range(5):
        b = G.acc + t * 4
        for hlf in range(2):
            x = xr + 2 * t + hlf
            A(f"v_lshlrev_b32 v{T}, 16, v{x}")
            A(f"v_and_b32 v{T+1}, 0xffff0000, v{x}")
            A(f"v_add_f32 v{b+2*hlf}, v{b+2*hlf}, v{T}")
            A(f"v_add_f32 v{b+2*hlf+1}, v{b+2*hlf+1}, v{T+1}")
        A(f"v_cvt_pk_bf16_f32 v{b}, v{b}, v{b+1}")
        A(f"v_cvt_pk_bf16_f32 v{b+1}, v{b+2}, v{b+3}")
        A.vmem(f"buffer_store_dwordx2 {vr(b,2)}, v{e+4}, s[52:55], 0 offen offset:{t*512}")
        for hlf in range(2):
            A(f"v_dot2_f32_bf16 v{e+5}, v{b+hlf}, v{G.vOnes}, v{e+5}")
            A(f"v_dot2_f32_bf16 v{e+6}, v{b+hlf}, v{b+hlf}, v{e+6}")
    A("s_nop 3")
    reduce_q4(A, e + 5, T)
    reduce_q4(A, e + 6, T)
    A(f"v_mov_b32 v{T}, v{e+5}")
    A(f"v_mov_b32 v{T+1}, v{e+6}")
    assert T % 2 == 0 or True
    A(f"s_lshl_b32 s6, s5, 3")
    A(f"v_lshl_add_u32 v{e+3}, v{e}, 6, s6")
    tt = T if T % 2 == 0 else None
    if tt is None:
        A(f"v_mov_b32 v{T+1}, v{e+5}")
        A(f"v_mov_b32 v{T+2}, v{e+6}")
        tt = T + 1
    A(f"buffer_store_dwordx2 {vr(tt,2)}, v{e+3}, s[56:59], 0 offen")
    epilogue_end(A, kn)
    return kn, G.vfree, 10 * G.SLOTB, 256, 80

def k_ffn1(A):
    kn = "ffn1_kernel"
    prologue(A, kn, 256)
    decode_mb_nb(A, 2, 16)
    G = Gemm(A, kn, a=2, NT=6, KST=20, act_mode="frag", astride=0, wstride=3072, nslot=10, pd=7, act_agpr=True, colsum=True, stats=False)
    srd(A, G.sW, P_W1, 0, D*F*2)
    srd(A, G.sA, P_WS, WS_H, SZ_H)
    srd(A, 48, P_B1, 0, F*2)
    srd(A, 52, P_WS, WS_Z, SZ_Z)
    srd(A, 56, P_WS, WS_ST, SZ_ST)
    A("s_lshl_b32 s4, s4, 7")
    G.setup("s4", "s5")
    T = G.vT
    G.vfree = (G.vfree + 3) & ~3
    st = G.vfree; G.vfree += 8
    br = G.vfree; G.vfree += 12
    e = G.vfree; G.vfree += 10
    A(f"s_lshl_b32 s6, s3, 5")
    A(f"s_add_u32 s6, s6, s4")
    A(f"v_and_b32 v{e}, 15, v1")
    A(f"v_add_u32 v{e}, s6, v{e}")
    A(f"v_lshrrev_b32 v{e+1}, 4, v1")
    A(f"s_mul_i32 s6, s5, 96")
    A(f"v_lshl_add_u32 v{e+2}, v{e+1}, 2, s6")
    A(f"v_lshlrev_b32 v{e+3}, 1, v{e+2}")
    for t in range(6):
        A.vmem(f"buffer_load_dwordx2 {vr(br+2*t,2)}, v{e+3}, s[48:51], 0 offen offset:{t*32}")
    A(f"v_lshlrev_b32 v{e+3}, 6, v{e}")
    A(f"v_lshl_add_u32 v{e+3}, v{e+1}, 4, v{e+3}")
    for mi in range(2):
        A.vmem(f"buffer_load_dwordx4 {vr(st+4*mi,4)}, v{e+3}, s[56:59], 0 offen offset:{mi*1024}")
    frag_addr(A, e + 4, e, e + 2, 48, T, T + 1)
    G.mainloop()
    G.colsum_exchange()
    for mi in range(2):
        s0 = st + 4 * mi
        A(f"v_add_f32 v{s0}, v{s0}, v{s0+2}")
        A(f"v_add_f32 v{s0+1}, v{s0+1}, v{s0+3}")
        reduce_q4(A, s0, T)
        reduce_q4(A, s0 + 1, T)
        ln_stats(A, s0, s0 + 1, s0 + 2, s0 + 3, T)
    A(f"s_mov_b32 s6, {48*1024}")
    for t in range(6):
        for hlf in range(2):
            A(f"v_lshlrev_b32 v{e+5+2*hlf}, 16, v{br+2*t+hlf}")
            A(f"v_and_b32 v{e+6+2*hlf}, 0xffff0000, v{br+2*t+hlf}")
        for mi in range(2):
            vmean, vrstd = st + 4 * mi + 2, st + 4 * mi + 3
            b = G.acc + (mi * 6 + t) * 4
            for r in range(4):
                A(f"v_fma_f32 v{b+r}, -v{vmean}, v{G.cs+t*4+r}, v{b+r}")
                A(f"v_fma_f32 v{b+r}, v{b+r}, v{vrstd}, v{e+5+r}")
                A(f"v_max_f32 v{b+r}, 0, v{b+r}")
                A(f"v_mul_f32 v{b+r}, v{b+r}, v{b+r}")
            A(f"v_cvt_pk_bf16_f32 v{b}, v{b}, v{b+1}")
            A(f"v_cvt_pk_bf16_f32 v{b+1}, v{b+2}, v{b+3}")
            so = "0" if mi == 0 else "s6"
            A.vmem(f"buffer_store_dwordx2 {vr(b,2)}, v{e+4}, s[52:55], {so} offen offset:{t*512}")
    epilogue_end(A, kn)
    return kn, G.vfree, 10 * G.SLOTB, 256, 160

def k_ffn2(A):
    kn = "ffn2_kernel"
    prologue(A, kn, 256)
    decode_mb_nb(A, 4, 8)
    G = Gemm(A, kn, a=1, NT=5, KST=48, act_mode="frag", astride=0, wstride=1280, nslot=12, pd=10, act_agpr=True, colsum=False, stats=False)
    srd(A, G.sW, P_W2, 0, F*D*2)
    srd(A, G.sA, P_WS, WS_Z, SZ_Z)
    srd(A, 48, P_B2, 0, D*2)
    srd(A, 52, P_WS, WS_H, SZ_H)
    srd(A, 56, P_OUT, 0, S*D*2)
    A("s_lshl_b32 s4, s4, 6")
    G.setup("s4", "s5")
    T = G.vT
    G.vfree = (G.vfree + 1) & ~1
    hr = G.vfree; G.vfree += 10
    br = G.vfree; G.vfree += 10
    e = G.vfree; G.vfree += 8
    A(f"s_lshl_b32 s6, s3, 4")
    A(f"s_add_u32 s6, s6, s4")
    A(f"v_and_b32 v{e}, 15, v1")
    A(f"v_add_u32 v{e}, s6, v{e}")
    A(f"v_lshrrev_b32 v{e+1}, 4, v1")
    A(f"s_mul_i32 s6, s5, 80")
    A(f"v_lshl_add_u32 v{e+2}, v{e+1}, 2, s6")
    A(f"v_mul_u32_u24 v{e+3}, 1280, v{e}")
    A(f"v_lshl_add_u32 v{e+3}, v{e+2}, 1, v{e+3}")
    frag_addr(A, e + 4, e, e + 2, 20, T, T + 1)
    A(f"v_lshlrev_b32 v{e+5}, 1, v{e+2}")
    for t in range(5):
        A.vmem(f"buffer_load_dwordx2 {vr(hr+2*t,2)}, v{e+4}, s[52:55], 0 offen offset:{t*512}")
        A.vmem(f"buffer_load_dwordx2 {vr(br+2*t,2)}, v{e+5}, s[48:51], 0 offen offset:{t*32}")
    G.mainloop()
    for t in range(5):
        b = G.acc + t * 4
        for src in (hr, br):
            for hlf in range(2):
                x = src + 2 * t + hlf
                A(f"v_lshlrev_b32 v{T}, 16, v{x}")
                A(f"v_and_b32 v{T+1}, 0xffff0000, v{x}")
                A(f"v_add_f32 v{b+2*hlf}, v{b+2*hlf}, v{T}")
                A(f"v_add_f32 v{b+2*hlf+1}, v{b+2*hlf+1}, v{T+1}")
        A(f"v_cvt_pk_bf16_f32 v{b}, v{b}, v{b+1}")
        A(f"v_cvt_pk_bf16_f32 v{b+1}, v{b+2}, v{b+3}")
        A.vmem(f"buffer_store_dwordx2 {vr(b,2)}, v{e+3}, s[56:59], 0 offen offset:{t*32}")
    epilogue_end(A, kn)
    return kn, G.vfree, 12 * G.SLOTB, 256, 192

def k_attn(A):
    kn = "attn_kernel"
    prologue(A, kn, 256)
    SLOT = 24576; CH = 8 * TB
    srd(A, 36, P_WS, WS_KV, SZ_KV)
    srd(A, 40, P_WS, WS_Q, SZ_Q)
    srd(A, 44, P_WS, WS_O, SZ_O)
    A("s_lshr_b32 s4, s2, 3")
    A("s_and_b32 s5, s2, 7")
    A("s_lshr_b32 s6, s3, 1")
    A("s_lshl_b32 s5, s5, 2")
    A("s_add_u32 s5, s5, s6")
    A("s_and_b32 s6, s3, 1")
    A("s_lshl_b32 s4, s4, 1")
    A("s_add_u32 s4, s4, s6")
    A("s_lshl_b32 s4, s4, 5")
    vDma, vK0, vK1, vV, vL0, vL1, vLV, vq, vhf, T = 4, 5, 6, 7, 8, 9, 10, 11, 12, 13
    Q0, Q1 = 20, 24
    KA = [28, 36]
    VA = [44, 52]
    P = 60
    Sx = [68, 84]
    O = 100
    NV = 116
    A(f"v_and_b32 v{vq}, 31, v1")
    A(f"v_lshrrev_b32 v{vhf}, 5, v1")
    A("s_mul_i32 s7, s3, 3072")
    A(f"v_lshlrev_b32 v{vDma}, 4, v1")
    A(f"v_add_u32 v{vDma}, s7, v{vDma}")
    def dma(slot_s, chunk_s):
        A(f"s_add_u32 m0, s7, {slot_s}")
        A("s_nop 0")
        for i in range(3):
            A(f"buffer_load_dwordx4 v{vDma}, s[36:39], {chunk_s} offen offset:{i*1024} lds")
    A("s_mov_b32 s48, 0")
    dma("0", "s48")
    A(f"s_mov_b32 s48, {CH}")
    dma(f"{SLOT}", "s48")
    A(f"v_add_u32 v{T}, s4, v{vq}")
    A(f"v_mul_u32_u24 v{T}, 1280, v{T}")
    A("s_mul_i32 s6, s5, 40")
    A(f"v_add_u32 v{T}, s6, v{T}")
    A(f"v_lshl_add_u32 v{T+1}, v{vhf}, 4, v{T}")
    A(f"buffer_load_dwordx4 {vr(Q0,4)}, v{T+1}, s[40:43], 0 offen")
    A(f"buffer_load_dwordx2 {vr(Q1,2)}, v{T}, s[40:43], 0 offen offset:32")
    A(f"v_lshlrev_b32 v{vL0}, 4, v1")
    A(f"v_lshlrev_b32 v{vL1}, 3, v{vq}")
    A(f"v_add_u32 v{vL1}, 1024, v{vL1}")
    A(f"v_min_u32 v{vLV}, 20, v{vq}")
    A(f"v_mad_u32_u24 v{vLV}, v{vhf}, 21, v{vLV}")
    A(f"v_lshlrev_b32 v{vLV}, 4, v{vLV}")
    A(f"v_add_u32 v{vLV}, 1280, v{vLV}")
    A(f"v_mov_b32 v{vK0}, v{vL0}")
    A(f"v_mov_b32 v{vK1}, v{vL1}")
    A(f"v_mov_b32 v{vV}, v{vLV}")
    A(f"v_sub_u32 v{T+2}, 1, v{vhf}")
    for b in range(2):
        A(f"v_mul_u32_u24 v{KA[b]+6}, 0x3f80, v{T+2}")
        A(f"v_lshl_add_u32 v{KA[b]+6}, v{KA[b]+6}, 16, v{KA[b]+6}")
        A(f"v_mul_u32_u24 v{KA[b]+7}, 0x3f80, v{T+2}")
    A(f"v_mov_b32 v{Q1+2}, 0")
    A(f"v_mov_b32 v{Q1+3}, 0")
    for i in range(16):
        A(f"v_mov_b32 v{O+i}, 0")
    A("s_waitcnt vmcnt(0)")
    A(f"v_mul_lo_u32 v{Q1}, v{Q1}, v{T+2}")
    A(f"v_mul_lo_u32 v{Q1+1}, v{Q1+1}, v{T+2}")
    A("s_barrier")
    def rdK(b, j):
        A(f"ds_read_b128 {vr(KA[b],4)}, v{vK0} offset:{j*TB}")
        A(f"ds_read_b64 {vr(KA[b]+4,2)}, v{vK1} offset:{j*TB}")
    def rdV(b, j):
        A(f"ds_read_b128 {vr(VA[b],4)}, v{vV} offset:{j*TB}")
        A(f"ds_read_b128 {vr(VA[b]+4,4)}, v{vV} offset:{j*TB+672}")
    def qk(sb, kb):
        A(f"v_mfma_f32_32x32x16_bf16 {vr(Sx[sb],16)}, {vr(KA[kb],4)}, {vr(Q0,4)}, 0")
        A(f"v_mfma_f32_32x32x16_bf16 {vr(Sx[sb],16)}, {vr(KA[kb]+4,4)}, {vr(Q1,4)}, {vr(Sx[sb],16)}")
    def set_max(vm):
        A(f"v_mov_b32 v{T+1}, v{vm}")
        A("s_nop 1")
        A(f"v_permlane32_swap_b32 v{vm}, v{T+1}")
        A("s_nop 1")
        A(f"v_max_f32 v{vm}, v{vm}, v{T+1}")
        A(f"v_sub_f32 v{vm}, 0, v{vm}")
        bf16r(A, T + 1, vm)
        A(f"v_sub_f32 v{T+2}, v{vm}, v{T+1}")
        bf16r(A, T + 3, T + 2)
        A(f"v_sub_f32 v{T+2}, v{T+2}, v{T+3}")
        A(f"v_cvt_pk_bf16_f32 v{Q1+2}, v{T+1}, v{T+3}")
        A(f"v_cvt_pk_bf16_f32 v{Q1+3}, v{T+2}, 0")
        A("s_nop 1")
    def tile_max(S0, vm, first):
        if first:
            A(f"v_max3_f32 v{vm}, v{S0}, v{S0+1}, v{S0+2}")
            A(f"v_max_f32 v{vm}, v{vm}, v{S0+3}")
            rng = range(4, 16, 2)
        else:
            rng = range(0, 16, 2)
        for i in rng:
            A(f"v_max3_f32 v{vm}, v{vm}, v{S0+i}, v{S0+i+1}")
    rdK(0, 0)
    rdK(1, 1)
    rdV(0, 0)
    A("s_waitcnt lgkmcnt(4)")
    qk(0, 0)
    A("s_nop 7")
    A("s_nop 7")
    tile_max(Sx[0], T, True)
    set_max(T)
    qk(0, 0)
    for i in range(4):
        A(f"v_mov_b32 v{P+4+i}, 0")
        A(f"v_mov_b32 v{VA[1]+4+i}, 0")
    A("s_mov_b32 s49, 0")
    A(f"s_mov_b32 s50, 0")
    A(f"s_mov_b32 s48, {2*CH}")
    A("s_nop 7")
    A.label(f"{kn}_loop")
    for j in range(8):
        a, b = j % 2, (j + 1) % 2
        if j == 6:
            A("s_waitcnt vmcnt(0)")
            A("s_barrier")
            A(f"s_add_u32 s51, s50, {SLOT}")
            A(f"s_cmp_eq_u32 s51, {3*SLOT}")
            A("s_cselect_b32 s51, 0, s51")
            A(f"s_add_u32 s52, s51, {SLOT}")
            A(f"s_cmp_eq_u32 s52, {3*SLOT}")
            A("s_cselect_b32 s52, 0, s52")
            dma("s52", "s48")
            A(f"s_add_u32 s48, s48, {CH}")
            A(f"v_add_u32 v{vK0}, s51, v{vL0}")
            A(f"v_add_u32 v{vK1}, s51, v{vL1}")
        if j == 7:
            A(f"v_add_u32 v{vV}, s51, v{vLV}")
            A("s_mov_b32 s50, s51")
        rdK(a, (j + 2) % 8)
        A(f"v_mfma_f32_32x32x16_bf16 {vr(O,16)}, {vr(VA[b]+4,4)}, {vr(P+4,4)}, {vr(O,16)}")
        rdV(b, (j + 1) % 8)
        A("s_waitcnt lgkmcnt(4)")
        Sa, Sb = Sx[a], Sx[b]
        A(f"v_exp_f32 v{Sa}, v{Sa}")
        A(f"v_exp_f32 v{Sa+1}, v{Sa+1}")
        A(f"v_mfma_f32_32x32x16_bf16 {vr(Sb,16)}, {vr(KA[b],4)}, {vr(Q0,4)}, 0")
        for i in range(2, 6):
            A(f"v_exp_f32 v{Sa+i}, v{Sa+i}")
        A(f"v_mfma_f32_32x32x16_bf16 {vr(Sb,16)}, {vr(KA[b]+4,4)}, {vr(Q1,4)}, {vr(Sb,16)}")
        for i in range(6, 8):
            A(f"v_exp_f32 v{Sa+i}, v{Sa+i}")
        for i in range(4):
            A(f"v_cvt_pk_bf16_f32 v{P+i}, v{Sa+2*i}, v{Sa+2*i+1}")
        for i in range(8, 10):
            A(f"v_exp_f32 v{Sa+i}, v{Sa+i}")
        A(f"v_mfma_f32_32x32x16_bf16 {vr(O,16)}, {vr(VA[a],4)}, {vr(P,4)}, {vr(O,16)}")
        for i in range(10, 16):
            A(f"v_exp_f32 v{Sa+i}, v{Sa+i}")
        for i in range(4, 8):
            A(f"v_cvt_pk_bf16_f32 v{P+i}, v{Sa+2*i}, v{Sa+2*i+1}")
    A("s_add_u32 s49, s49, 1")
    A("s_cmp_lt_u32 s49, 8")
    A(f"s_cbranch_scc1 {kn}_loop")
    A(f"v_mfma_f32_32x32x16_bf16 {vr(O,16)}, {vr(VA[1]+4,4)}, {vr(P+4,4)}, {vr(O,16)}")
    A("s_waitcnt vmcnt(0) lgkmcnt(0)")
    A("s_mov_b32 s53, 0")
    A.label(f"{kn}_fin")
    A("s_nop 7")
    A("s_nop 7")
    A(f"v_mov_b32 v{T}, v{O+8}")
    A(f"v_mov_b32 v{T+1}, v{O+8}")
    A("s_nop 1")
    A(f"v_permlane32_swap_b32 v{T}, v{T+1}")
    A("s_cmp_lg_u32 s53, 0")
    A(f"s_cbranch_scc1 {kn}_store")
    A(f"v_add_f32 v{T+2}, abs(v{O}), abs(v{O+1})")
    for i in range(2, 8):
        A(f"v_add_f32 v{T+2}, v{T+2}, abs(v{O+i})")
    for i in range(8, 12):
        A(f"v_add_f32 v{T+2}, v{T+2}, abs(v{O+i})")
    A(f"v_mov_b32 v{T+3}, 0x7f000000")
    A(f"v_cmp_lt_f32 s[54:55], v{T+2}, v{T+3}")
    A(f"v_mov_b32 v{T+3}, {f32bits(2.0**-64):#x}")
    A(f"v_cmp_ge_f32 s[56:57], v{T+1}, v{T+3}")
    A(f"v_mov_b32 v{T+3}, {f32bits(2.0**64):#x}")
    A(f"v_cmp_le_f32 s[58:59], v{T+1}, v{T+3}")
    A("s_and_b64 s[54:55], s[54:55], s[56:57]")
    A("s_and_b64 s[54:55], s[54:55], s[58:59]")
    A("s_cmp_eq_u64 s[54:55], -1")
    A(f"s_cbranch_scc1 {kn}_store")
    A(f"v_mov_b32 v{Q1+2}, 0")
    A(f"v_mov_b32 v{Q1+3}, 0")
    A(f"v_mov_b32 v{T}, 0xff800000")
    A("s_mov_b32 s48, 0")
    A.label(f"{kn}_slow1")
    A(f"buffer_load_dwordx4 {vr(KA[0],4)}, v{vL0}, s[36:39], s48 offen")
    A(f"buffer_load_dwordx2 {vr(KA[0]+4,2)}, v{vL1}, s[36:39], s48 offen")
    A("s_waitcnt vmcnt(0)")
    qk(0, 0)
    A("s_nop 7")
    A("s_nop 7")
    tile_max(Sx[0], T, False)
    A(f"s_add_u32 s48, s48, {TB}")
    A(f"s_cmp_lt_u32 s48, {64*TB}")
    A(f"s_cbranch_scc1 {kn}_slow1")
    set_max(T)
    for i in range(16):
        A(f"v_mov_b32 v{O+i}, 0")
    A("s_mov_b32 s48, 0")
    A.label(f"{kn}_slow2")
    A(f"buffer_load_dwordx4 {vr(KA[0],4)}, v{vL0}, s[36:39], s48 offen")
    A(f"buffer_load_dwordx2 {vr(KA[0]+4,2)}, v{vL1}, s[36:39], s48 offen")
    A(f"buffer_load_dwordx4 {vr(VA[0],4)}, v{vLV}, s[36:39], s48 offen")
    A(f"buffer_load_dwordx4 {vr(VA[0]+4,4)}, v{vLV}, s[36:39], s48 offen offset:672")
    A("s_waitcnt vmcnt(0)")
    qk(0, 0)
    A("s_nop 7")
    A("s_nop 7")
    for i in range(16):
        A(f"v_exp_f32 v{Sx[0]+i}, v{Sx[0]+i}")
    A("s_nop 0")
    for i in range(8):
        A(f"v_cvt_pk_bf16_f32 v{P+i}, v{Sx[0]+2*i}, v{Sx[0]+2*i+1}")
    A("s_nop 1")
    A(f"v_mfma_f32_32x32x16_bf16 {vr(O,16)}, {vr(VA[0],4)}, {vr(P,4)}, {vr(O,16)}")
    A(f"v_mfma_f32_32x32x16_bf16 {vr(O,16)}, {vr(VA[0]+4,4)}, {vr(P+4,4)}, {vr(O,16)}")
    A(f"s_add_u32 s48, s48, {TB}")
    A(f"s_cmp_lt_u32 s48, {64*TB}")
    A(f"s_cbranch_scc1 {kn}_slow2")
    A("s_mov_b32 s53, 1")
    A(f"s_branch {kn}_fin")
    A.label(f"{kn}_store")
    A(f"v_rcp_f32 v{T+1}, v{T+1}")
    A(f"v_add_u32 v{T+2}, s4, v{vq}")
    A("s_mul_i32 s6, s5, 20")
    A(f"v_lshl_add_u32 v{T+3}, v{vhf}, 2, s6")
    for g in range(3):
        for i in range(4):
            A(f"v_mul_f32 v{O+4*g+i}, v{O+4*g+i}, v{T+1}")
        A(f"v_cvt_pk_bf16_f32 v{O+4*g}, v{O+4*g}, v{O+4*g+1}")
        A(f"v_cvt_pk_bf16_f32 v{O+4*g+1}, v{O+4*g+2}, v{O+4*g+3}")
        frag_addr(A, T + 4, T + 2, T + 3, 20, T + 5, T + 6)
        if g == 2:
            A("s_mov_b32 exec_lo, 0xffffffff\ns_mov_b32 exec_hi, 0")
        A(f"buffer_store_dwordx2 {vr(O+4*g,2)}, v{T+4}, s[44:47], 0 offen")
        if g < 2:
            A(f"v_add_u32 v{T+3}, 8, v{T+3}")
    epilogue_end(A, kn)
    return kn, NV, 3 * SLOT, 512

def build(which=("qkv", "attn", "wo", "ffn1", "ffn2")):
    body = []
    descs = []
    launches = []
    for w in ("qkv", "attn", "wo", "ffn1", "ffn2"):
        A = Asm()
        r = globals()["k_" + w](A)
        kn, nv, lds, block = r[:4]
        nacc = r[4] if len(r) > 4 else 0
        accum = (nv + 3) & ~3
        assert accum <= 256, (kn, accum)
        body.append(A.text())
        descs.append(kernel_desc(kn, accum + nacc, accum))
        if w in which:
            launches.append(f"; @launch kernel={kn} grid=(256,1,1) block=({block},1,1) lds={lds}")
    head = open("cdna_kernels/" + NAME + ".s.ref").read().split("; Override launch geometry")[0]
    out = head + "\n".join(launches) + "\n"
    out += '.amdgcn_target "amdgcn-amd-amdhsa--gfx950"\n.text\n'
    out += "\n".join(body)
    out += '.section .rodata,"a"\n'
    for d in descs:
        out += ".p2align 6\n" + d
    return out

if __name__ == "__main__":
    dst = sys.argv[1] if len(sys.argv) > 1 else "cdna_kernels/" + NAME + ".s"
    open(dst, "w").write(build())
    print("wrote", dst)
```
